```python
import torch

def _softmax(x, axis=-1):
    return torch.softmax(x, dim=axis)
def _gelu(x):
    return torch.nn.functional.gelu(x, approximate="tanh")
def _silu(x):
    return torch.nn.functional.silu(x)
def _sigmoid(x):
    return torch.sigmoid(x)
def _layernorm(x, axis=-1, eps=1e-5):
    m = x.mean(dim=axis, keepdim=True)
    v = x.var(dim=axis, keepdim=True, unbiased=False)
    return (x - m) / torch.sqrt(v + eps)
def _scatter_add(tgt, idx, src, axis=0):
    return tgt.clone().index_add_(axis, idx, src)
def _segment_sum(src, seg, n):
    out = torch.zeros((n,) + src.shape[1:], dtype=src.dtype)
    return out.index_add_(0, seg, src)
def _pad(x, pw):
    flat = tuple(v for pair in reversed(pw) for v in pair)
    return torch.nn.functional.pad(x, flat)

kernel_name = 'standalone__mixer_channel_mlp__prompt'

def setup_inputs():

    _w = (lambda a: (lambda t: t.to(torch.bfloat16) if t.is_floating_point() else t)(torch.as_tensor(a)))
    B, S, D, F = 1, 2048, 576, 4608
    return {
        "x": _w((lambda *s: torch.randn(*s, dtype=torch.bfloat16) * 0.05)(B, S, D)),
        "w1": _w((lambda *s: torch.randn(*s, dtype=torch.bfloat16) * 0.8)(D, F) * (D ** -0.5)),
        "b1": _w((lambda *s: torch.randn(*s, dtype=torch.bfloat16) * 0.4)(F)),
        "w2": _w((lambda *s: torch.randn(*s, dtype=torch.bfloat16) * 0.05)(F, D) * (F ** -0.5)),
        "b2": _w((lambda *s: torch.randn(*s, dtype=torch.bfloat16) * 0.05)(D)),
    }

def reference(x, w1, b1, w2, b2):
    y = _layernorm(x, axis=-1)
    h = _gelu(torch.einsum("bsd,df->bsf", y, w1) + b1)
    return torch.einsum("bsf,fd->bsd", h, w2) + b2
```

```python
import re
TRANS = ("v_exp_f32", "v_log_f32", "v_rcp_f32", "v_rsq_f32", "v_sqrt_f32", "v_sin_f32", "v_cos_f32")
def regs(op):
    op = op.strip().lstrip("-")
    if op.startswith("abs("): op = op[4:-1]
    m = re.fullmatch(r"([vas])(\d+)", op)
    if m: return {(m.group(1), int(m.group(2)))}
    m = re.fullmatch(r"([vas])\[(\d+):(\d+)\]", op)
    if m: return {(m.group(1), i) for i in range(int(m.group(2)), int(m.group(3)) + 1)}
    if op == "vcc": return {("s", 106), ("s", 107)}
    if op == "m0": return {("m", 0)}
    if op == "exec": return {("e", 0)}
    return set()
def parse(line):
    line = line.split(";")[0].strip()
    if not line or line.endswith(":") or line.startswith("."): return None
    parts = line.split(None, 1)
    mn = parts[0]; rest = parts[1] if len(parts) > 1 else ""
    ops = [o.strip() for o in re.split(r",(?![^\[]*\])", rest)] if rest else []
    mods = ""
    if ops:
        toks = ops[-1].split()
        ops[-1] = toks[0]; mods = " ".join(toks[1:])
    I = dict(mn=mn, text=line, dst=set(), src=set(), cls="other", mods=mods)
    if mn.startswith("v_mfma"):
        I["cls"] = "mfma"; I["dst"] = regs(ops[0]); I["A"] = regs(ops[1]); I["B"] = regs(ops[2]); I["C"] = regs(ops[3])
        I["src"] = I["A"] | I["B"] | I["C"]; I["passes"] = 8 if "32x32x16" in mn else 4
    elif mn.startswith("v_"):
        I["cls"] = "valu"
        if mn.startswith("v_cmp"):
            I["dst"] = regs(ops[0]); srcs = ops[1:]
        elif mn.startswith("v_permlane") and "swap" in mn:
            I["dst"] = regs(ops[0]) | regs(ops[1]); srcs = ops
        elif mn in ("v_add_co_u32", "v_addc_co_u32", "v_sub_co_u32"):
            I["dst"] = regs(ops[0]) | regs(ops[1]); srcs = ops[2:]
        else:
            I["dst"] = regs(ops[0]); srcs = ops[1:]
            if mn.startswith(("v_fmac", "v_dot2c", "v_pk_fmac")): srcs = ops
        for o in srcs: I["src"] |= regs(o)
        if mn == "v_cndmask_b32" and len(ops) == 3: I["src"] |= regs("vcc")
    elif mn.startswith("buffer_") or mn.startswith("global_"):
        I["cls"] = "vmem"
        lds = " lds" in (" " + mods) or "load_lds" in mn
        I["ldsdma"] = lds
        if "load" in mn and not lds:
            I["dst"] = regs(ops[0]); srcs = ops[1:]
        else: srcs = ops
        for o in srcs: I["src"] |= regs(o)
        if "store" in mn:
            I["data"] = regs(ops[0]) if mn.startswith("buffer_") else regs(ops[1])
            I["wide"] = mn.endswith("x4") or mn.endswith("x3")
        if lds: I["src"] |= {("m", 0)}
    elif mn.startswith("ds_"):
        I["cls"] = "lds"
        if "read" in mn or "permute" in mn or "swizzle" in mn:
            I["dst"] = regs(ops[0]); srcs = ops[1:]
        else: srcs = ops
        for o in srcs: I["src"] |= regs(o)
    elif mn.startswith("s_"):
        I["cls"] = "salu"
        if mn.startswith(("s_cmp", "s_cbranch", "s_branch", "s_waitcnt", "s_barrier", "s_nop", "s_endpgm", "s_setprio", "s_sleep")): pass
        elif ops:
            I["dst"] = regs(ops[0])
            for o in ops[1:]: I["src"] |= regs(o)
    I["ws"] = (int(ops[0], 0) + 1) if mn == "s_nop" else 1
    return I
def check(lines):
    ins = [p for p in (parse(l) for l in lines) if p]
    bad = 0
    for i, c in enumerate(ins):
        dist = 0
        for k in range(i - 1, max(-1, i - 24), -1):
            p = ins[k]
            need = 0; why = ""
            pv = {r for r in p["dst"] if r[0] in "va"}; ps = {r for r in p["dst"] if r[0] == "s"}
            if p["cls"] == "valu":
                if c["cls"] == "mfma" and pv & c["src"]: need, why = 2, "valu->mfma"
                if p["mn"] in TRANS and c["cls"] == "valu" and c["mn"] not in TRANS and pv & c["src"]: need, why = max(need, 1), "trans->valu"
                if c["mn"] in ("v_readfirstlane_b32", "v_readlane_b32") and pv & c["src"]: need, why = max(need, 1), "valu->readlane"
                if c["mn"].startswith("v_permlane") and pv & c["src"]: need, why = max(need, 2), "valu->permlane"
                if "dpp" in c["text"] or "row_" in c["text"]:
                    if pv & c["src"]: need, why = max(need, 2), "valu->dpp"
                if ps and c["cls"] == "valu" and ps & c["src"]: need, why = max(need, 2), "valu sgpr->valu"
                if ps and c["cls"] == "vmem" and ps & c["src"]: need, why = max(need, 5), "valu sgpr->vmem"
                if p["mn"].startswith("v_dot"):
                    if c["mn"] != p["mn"] and pv & (c["src"] | c["dst"]): need, why = max(need, 3), "dot->other"
            if p["cls"] == "mfma":
                n8 = p["passes"] == 8
                if c["cls"] == "mfma":
                    if pv & (c["A"] | c["B"]): need, why = (12 if n8 else 8), "mfma->mfma AB"
                    elif pv & c["C"] and pv != c["C"]: need, why = (10 if n8 else 6), "mfma->mfma C partial"
                elif c["cls"] in ("valu", "vmem", "lds") and pv & (c["src"] | c["dst"]): need, why = (12 if n8 else 8), "mfma->use"
                if c["cls"] == "valu" and p["C"] & c["dst"]: need, why = max(need, 7 if n8 else 3), "mfma C WAR"
            if p["cls"] == "salu" and ("m", 0) in p["dst"] and c.get("ldsdma"): need, why = 1, "m0->dma"
            if p["cls"] == "vmem" and p.get("wide") and p["data"] & c["dst"]: need, why = (2 if c["cls"] == "valu" else 1), "store WAR"
            if need > dist:
                print(f"HAZARD {why}: need {need} have {dist}\n   {p['text']}\n   {c['text']}"); bad += 1
            dist += p["ws"]
    if bad: raise SystemExit(f"{bad} hazards")
```

```python
import math, re, struct, sys

class Cfg:
    NS = 1
    store_pol = "sc1"
    prefetch = True
    stamps = False
    R = 3
    ld_pol = ""

def f32(x):
    return struct.unpack("<I", struct.pack("<f", x))[0]

LOG2E = 1.4426950408889634
C0 = -2.0 * math.sqrt(2.0 / math.pi) * LOG2E
C1 = C0 * 0.044715
SC = -(abs(C1) ** (1.0 / 3.0))
KG = C0 / SC

H_BASE = 0
SLOT0 = 73728
STAGE = 24576
BIAS_BASE = SLOT0 + 3 * STAGE
LDS_BYTES = BIAS_BASE + 4096

class Emit:
    def __init__(self):
        self.lines = []
        self.vm = []
        self.lg = []
    def raw(self, t):
        for l in t.split("\n"):
            l = l.strip()
            if l: self.lines.append(l)
    def _need(self, q, tags, maxn):
        idx = -1
        for i, t in enumerate(q):
            if t in tags: idx = i
        if idx < 0: return None
        n = len(q) - 1 - idx
        return min(n, maxn)
    def wait(self, vm=(), lg=(), vm_all=False, lg_all=False):
        parts = []
        n = 0 if (vm_all and self.vm) else self._need(self.vm, set(vm), 63)
        if n is not None:
            parts.append(f"vmcnt({n})"); self.vm = self.vm[len(self.vm) - n:] if n else []
        n = 0 if (lg_all and self.lg) else self._need(self.lg, set(lg), 15)
        if n is not None:
            parts.append(f"lgkmcnt({n})"); self.lg = self.lg[len(self.lg) - n:] if n else []
        if parts: self.lines.append("s_waitcnt " + " ".join(parts))
    def ins(self, I):
        if isinstance(I, str):
            self.raw(I); return
        self.wait(vm=I.get("nvm", ()), lg=I.get("nlg", ()), vm_all=I.get("vm_all", False), lg_all=I.get("lg_all", False))
        self.raw(I["t"])
        if "vm" in I: self.vm.append(I["vm"])
        if "lg" in I: self.lg.append(I["lg"])

def breg(j, s):
    n = s * 4 + j
    if n < 64: return f"a[{4*n}:{4*n+3}]"
    b = 224 + 4 * (n - 64)
    return f"v[{b}:{b+3}]"

def acc(p, j):
    b = 32 + 16 * p + 4 * j
    return b

def lds_addr(bases, off):
    return bases[off >> 16], off & 0xffff

def stamp(E, cfg, idx):
    if not cfg.stamps: return
    E.raw(f"s_memrealtime s[{60+2*idx}:{61+2*idx}]")

def main_kernel(cfg, name):
    E = Emit()
    A = E.raw
    NS = cfg.NS; G = 8 // NS
    A(f".globl {name}\n.p2align 8\n.type {name},@function\n{name}:")
    A("s_cmp_ge_u32 s2, 256")
    A(f"s_cbranch_scc1 {name}_end")
    stamp(E, cfg, 0)
    A("s_load_dwordx8 s[44:51], s[0:1], 0")
    A("s_load_dwordx2 s[52:53], s[0:1], 56")
    A("s_and_b32 s27, s2, 7\n s_lshr_b32 s28, s2, 3")
    A(f"s_and_b32 s25, s27, {G-1}\n s_mul_i32 s25, s25, {NS}\n s_and_b32 s29, s28, {NS-1}\n s_add_u32 s25, s25, s29")
    A(f"s_lshr_b32 s26, s27, {int(math.log2(G))}\n s_mul_i32 s26, s26, {32//NS}\n s_lshr_b32 s29, s28, {int(math.log2(NS))}\n s_add_u32 s26, s26, s29")
    A("v_lshrrev_b32 v26, 6, v0\n v_and_b32 v1, 63, v0")
    A("v_and_b32 v27, 15, v1\n v_lshrrev_b32 v28, 4, v1")
    A("v_readfirstlane_b32 s24, v26")
    A("s_lshl_b32 s30, s26, 6")
    A("v_lshlrev_b32 v29, 4, v26\n v_add_u32 v29, v29, v27\n v_add_u32 v29, s30, v29")
    A("v_mul_u32_u24 v29, 1152, v29\n v_lshlrev_b32 v30, 4, v28\n v_add_u32 v29, v29, v30")
    A("s_waitcnt lgkmcnt(0)")
    A("s_mov_b32 s4, s44\n s_mov_b32 s5, s45\n s_mov_b32 s6, 2359296\n s_mov_b32 s7, 0x20000")
    for s in range(18):
        E.ins(dict(t=f"buffer_load_dwordx4 v[{128+4*s}:{131+4*s}], v29, s[4:7], 0 offen offset:{64*s}", vm=f"x{s}"))
    A("s_mov_b32 s8, s46\n s_mov_b32 s9, s47\n s_mov_b32 s10, 5308416\n s_mov_b32 s11, 0x20000")
    A("s_mov_b32 s12, s50\n s_mov_b32 s13, s51\n s_mov_b32 s14, 5308416\n s_mov_b32 s15, 0x20000")
    A("s_mov_b32 s16, s52\n s_mov_b32 s17, s53\n s_mov_b32 s18, 18874368\n s_mov_b32 s19, 0x20000")
    A("s_mul_i32 s31, s25, 1152")
    A("s_add_u32 s20, s48, s31\n s_addc_u32 s21, s49, 0\n s_mov_b32 s22, 1152\n s_mov_b32 s23, 0x20000")
    A("v_lshlrev_b32 v30, 3, v0")
    E.ins(dict(t="buffer_load_dwordx2 v[200:201], v30, s[20:23], 0 offen", vm="b1"))
    A("v_lshrrev_b32 v30, 3, v1\n v_and_b32 v31, 7, v1")
    A("s_mul_i32 s32, s24, 48")
    A("v_add_u32 v202, s32, v30")
    A("v_and_b32 v203, 2, v30\n v_xor_b32 v203, v203, v31")
    A("v_xor_b32 v204, 4, v203")
    A("v_mul_u32_u24 v205, 9216, v202\n v_add_u32 v205, s31, v205")
    for i in range(6):
        src = "v203" if i % 2 == 0 else "v204"
        A(f"v_lshl_add_u32 v{8+i}, {src}, 4, v205")
        c = 8 * i * 9216 - (i % 3) * 1024
        if c: A(f"v_add_u32 v{8+i}, {c}, v{8+i}")
    A("s_mul_i32 s33, s25, 576")
    A("v_add_u32 v205, s33, v202\n v_mul_u32_u24 v205, 1152, v205")
    A("v_and_b32 v203, 6, v30\n v_xor_b32 v203, v203, v31")
    for i in range(6):
        A(f"v_lshl_add_u32 v{14+i}, v203, 4, v205")
        c = 8 * i * 1152 - (i % 3) * 1024
        if c: A(f"v_add_u32 v{14+i}, {c}, v{14+i}")
    A("s_mul_i32 s34, s24, 6144")

    def dma_stage(st):
        ph, r = divmod(st, 27); c, p = divmod(r, 3)
        slot = SLOT0 + (st % cfg.R) * STAGE
        out = []
        if ph == 0: so = 192 * p * 9216 + c * 128; srd = "s[8:11]"; vb = 8
        else: so = 192 * p * 1152 + c * 128; srd = "s[12:15]"; vb = 14
        for i in range(6):
            t = ""
            if i == 0: t += f"s_add_u32 m0, s34, {slot}\n s_mov_b32 s35, {so}\n"
            if i == 3: t += f"s_add_u32 m0, s34, {slot+3072}\n s_nop 0\n"
            t += f"buffer_load_dwordx4 v{vb+i}, {srd}, s35 offen offset:{(i%3)*1024} lds"
            out.append(dict(t=t, vm=f"st{st}"))
        return out
    for st in range(cfg.R):
        for I in dma_stage(st): E.ins(I)
    if cfg.prefetch:
        nsh = 32 // NS; rows = 576 // nsh
        lines = rows * 9
        nins = (lines + 255) // 256
        A(f"s_mul_i32 s36, s29, {rows}")
        for k in range(nins):
            A(f"v_add_u32 v202, {256*k}, v0")
            A(f"v_cvt_f32_u32 v203, v202\n v_add_f32 v203, 0.5, v203\n v_mul_f32 v203, {f32(1.0/rows):#x}, v203\n v_cvt_u32_f32 v203, v203")
            A(f"v_mul_u32_u24 v204, {rows}, v203\n v_sub_u32 v204, v202, v204\n v_add_u32 v204, s36, v204")
            A(f"v_lshlrev_b32 v203, 7, v203")
            A(f"v_min_u32 v203, 1024, v203")
            A(f"v_mul_u32_u24 v205, 9216, v204\n v_add3_u32 v205, v205, v203, s31")
            E.ins(dict(t=f"buffer_load_dword v{206+2*k}, v205, s[8:11], 0 offen", vm="pf"))
            A(f"v_add_u32 v204, s33, v204\n v_mul_u32_u24 v205, 1152, v204\n v_add_u32 v205, v205, v203")
            E.ins(dict(t=f"buffer_load_dword v{207+2*k}, v205, s[12:15], 0 offen", vm="pf"))
    A("v_lshrrev_b32 v30, 2, v27")
    A("v_bfe_u32 v31, v27, 1, 1\n v_lshl_add_u32 v31, v26, 1, v31")
    A("v_and_b32 v214, 1, v27\n v_lshlrev_b32 v214, 3, v214")
    A("v_lshl_add_u32 v215, v28, 3, v30")
    A("v_and_b32 v216, 2, v215\n v_bfe_u32 v217, v215, 3, 1\n v_lshl_or_b32 v216, v217, 2, v216")
    A("v_xor_b32 v216, v216, v31\n v_lshlrev_b32 v216, 4, v216\n v_lshl_add_u32 v2, v215, 7, v216\n v_add_u32 v2, v2, v214")
    A("v_add_u32 v3, 0x10000, v2\n v_add_u32 v4, 0x20000, v2")
    A("v_lshl_add_u32 v215, v28, 2, v30")
    A("v_and_b32 v216, 6, v215\n v_xor_b32 v216, v216, v31\n v_lshlrev_b32 v216, 4, v216\n v_lshl_add_u32 v5, v215, 7, v216\n v_add_u32 v5, v5, v214")
    A("v_add_u32 v6, 0x10000, v5\n v_add_u32 v7, 0x20000, v5")
    A("v_lshlrev_b32 v20, 4, v1\n v_add_u32 v21, 0x10000, v20")
    A("v_lshrrev_b32 v30, 1, v26\n v_lshl_add_u32 v22, v30, 12, v20\n v_and_b32 v30, 1, v26\n v_lshl_add_u32 v22, v30, 3, v22\n v_add_u32 v23, 0x10000, v22")
    A(f"v_lshlrev_b32 v24, 6, v26\n v_lshl_add_u32 v24, v28, 4, v24\n v_add_u32 v24, {BIAS_BASE}, v24")
    A("s_lshl_b32 s37, s26, 3\n s_add_u32 s37, s37, s25\n s_mul_i32 s37, s37, 73728")
    A("v_lshl_add_u32 v25, v26, 11, v20\n v_add_u32 v25, s37, v25")
    A("v_lshl_add_u32 v218, v26, 10, v20\n v_add_u32 v219, 0x10000, v218")
    A(f"s_mov_b32 s40, {f32(KG):#x}\n s_mov_b32 s41, 0x3f803f80\n s_mov_b32 s42, 0xffff0000\n s_mov_b32 s43, {f32(SC):#x}")
    A("v_mov_b32 v96, 0\n v_mov_b32 v97, 0\n v_mov_b32 v98, 0\n v_mov_b32 v99, 0")
    stamp(E, cfg, 1)
    for s in range(18):
        E.wait(vm=[f"x{s}"])
        for r in range(4):
            x = 128 + 4 * s + r
            A(f"v_dot2c_f32_bf16 v{96+(r&1)}, s41, v{x}")
            A(f"v_dot2c_f32_bf16 v{98+(r&1)}, v{x}, v{x}")
    stamp(E, cfg, 2)
    A("s_nop 2")
    A("v_add_f32 v96, v96, v97\n v_add_f32 v98, v98, v99")
    A("s_nop 0\n v_mov_b32 v97, v96\n v_mov_b32 v99, v98\n s_nop 1")
    A("v_permlane32_swap_b32 v96, v97\n v_permlane32_swap_b32 v98, v99\n s_nop 0")
    A("v_add_f32 v96, v96, v97\n v_add_f32 v98, v98, v99")
    A("s_nop 0\n v_mov_b32 v97, v96\n v_mov_b32 v99, v98\n s_nop 1")
    A("v_permlane16_swap_b32 v96, v97\n v_permlane16_swap_b32 v98, v99\n s_nop 0")
    A("v_add_f32 v96, v96, v97\n v_add_f32 v98, v98, v99")
    inv = f32(1.0 / 576.0)
    A(f"v_mul_f32 v96, {inv:#x}, v96\n v_mul_f32 v98, {inv:#x}, v98")
    A("v_fma_f32 v98, -v96, v96, v98\n v_max_f32 v98, 0, v98")
    A(f"v_add_f32 v98, {f32(1e-5):#x}, v98\n v_rsq_f32 v98, v98\n s_nop 0")
    A("v_mul_f32 v100, s43, v98")
    A("v_mul_f32 v102, v96, v100\n v_sub_f32 v102, 0, v102")
    E.wait(vm=["b1"])
    A("v_lshlrev_b32 v104, 16, v200\n v_and_b32 v105, s42, v200\n v_lshlrev_b32 v106, 16, v201\n v_and_b32 v107, s42, v201")
    A("v_mul_f32 v104, s43, v104\n v_mul_f32 v105, s43, v105\n v_mul_f32 v106, s43, v106\n v_mul_f32 v107, s43, v107")
    A(f"v_lshlrev_b32 v108, 4, v0\n v_add_u32 v108, {BIAS_BASE}, v108")
    E.ins(dict(t="ds_write_b128 v108, v[104:107]", lg="biasw"))
    for s in range(18):
        for r in range(4):
            x = 128 + 4 * s + r; t = 110 + 2 * r
            A(f"v_lshlrev_b32 v{t}, 16, v{x}\n v_and_b32 v{t+1}, s42, v{x}")
        for r in range(4):
            t = 110 + 2 * r
            A(f"v_pk_fma_f32 v[{t}:{t+1}], v[{t}:{t+1}], v[100:101], v[102:103] op_sel_hi:[1,0,0]")
        for r in range(4):
            x = 128 + 4 * s + r; t = 110 + 2 * r
            A(f"v_cvt_pk_bf16_f32 v{x}, v{t}, v{t+1}")
        reg, imm = lds_addr(["v218", "v219"], H_BASE + s * 4096)
        E.ins(dict(t=f"ds_write_b128 {reg}, v[{128+4*s}:{131+4*s}] offset:{imm}", lg="yw"))
    stamp(E, cfg, 3)
    E.wait(vm=["st0"], lg_all=True)
    A("s_barrier")
    stamp(E, cfg, 4)

    NQ = 162
    pre = [[] for _ in range(NQ + 1)]
    fill = [[] for _ in range(NQ + 1)]

    def a_reads(q):
        ph = q // 81; st = q // 3; kp = q % 3
        slot = SLOT0 + (st % cfg.R) * STAGE
        buf = 72 + 8 * (q % 3)
        out = []
        for h in range(2):
            base = slot + (2 * kp + h) * 4096
            for rd in range(2):
                off = base + rd * (512 if ph == 0 else 2048)
                reg, imm = lds_addr(["v2", "v3", "v4"] if ph == 0 else ["v5", "v6", "v7"], off)
                d = buf + 4 * h + 2 * rd
                out.append(dict(t=f"ds_read_b64_tr_b16 v[{d}:{d+1}], {reg} offset:{imm}", lg=f"A{q}_{h}"))
        return out
    def frag_read(j, s, tag):
        reg, imm = lds_addr(["v20", "v21"], H_BASE + (s * 4 + j) * 1024)
        return dict(t=f"ds_read_b128 {breg(j, s)}, {reg} offset:{imm}", lg=tag)
    def bias_read(c):
        b = 64 + 4 * (c % 2)
        return dict(t=f"ds_read_b128 v[{b}:{b+3}], v24 offset:{c*256}", lg=f"bias{c}")
    def gelu(c):
        p = c % 2; out = []
        for j in range(4):
            a = acc(p, j); t = 96 + 8 * (j % 2)
            for r in range(4): out.append(f"v_fma_f32 v{t+r}, v{a+r}, v{a+r}, s40")
            for r in range(4): out.append(f"v_mul_f32 v{t+r}, v{a+r}, v{t+r}")
            for r in range(4): out.append(f"v_exp_f32 v{t+r}, v{t+r}")
            for r in range(4): out.append(f"v_add_f32 v{t+r}, 1.0, v{t+r}")
            for r in range(4): out.append(f"v_rcp_f32 v{t+r}, v{t+r}")
            for r in range(4): out.append(f"v_mul_f32 v{t+r}, v{a+r}, v{t+r}")
            out.append(f"v_cvt_pk_bf16_f32 v{t+4}, v{t}, v{t+1}")
            out.append(f"v_cvt_pk_bf16_f32 v{t+5}, v{t+2}, v{t+3}")
            reg, imm = lds_addr(["v22", "v23"], H_BASE + c * 8192 + j * 1024)
            out.append(dict(t=f"ds_write_b64 {reg}, v[{t+4}:{t+5}] offset:{imm}", lg=f"hw{c}"))
        return out
    def epi2(c):
        p = (c + 1) % 2; out = []
        for pr in range(2):
            t = 112 + 4 * pr
            for jj in range(2):
                a = acc(p, 2 * pr + jj)
                out.append(f"v_cvt_pk_bf16_f32 v{t+2*jj}, v{a}, v{a+1}")
                out.append(f"v_cvt_pk_bf16_f32 v{t+2*jj+1}, v{a+2}, v{a+3}")
            out.append(dict(t=f"s_mov_b32 s38, {c*8192}\n buffer_store_dwordx4 v[{t}:{t+3}], v25, s[16:19], s38 offen offset:{pr*1024} {cfg.store_pol}", vm=f"ps{c}"))
        return out
    def spread(items, q0, q1):
        n = q1 - q0 + 1
        for i, it in enumerate(items):
            fill[q0 + (i * n) // len(items)].append(it)

    init = [bias_read(0)] + a_reads(0)
    for s in range(2):
        for j in range(4): init.append(frag_read(j, s, f"B{s}"))
    init += a_reads(1)
    for s in range(2, 4):
        for j in range(4): init.append(frag_read(j, s, f"B{s}"))
    for I in init: E.ins(I)
    for kp in range(2, 9):
        for s in (2 * kp, 2 * kp + 1):
            for j in range(4): fill[kp - 2].append(frag_read(j, s, f"B{s}"))
    for st in range(1, 54):
        q = 3 * st - 2
        pre[q].append(dict(t="s_barrier", nvm=[f"st{st}"], lg_all=True))
        if st + cfg.R - 1 < 54:
            fill[q] = dma_stage(st + cfg.R - 1) + fill[q]
    for q in range(NQ - 2):
        rd = a_reads(q + 2)
        fill[q] = rd + fill[q]
    for c in range(1, 9): fill[9 * c - 2].append(bias_read(c))
    for c in range(8): spread(gelu(c), 9 * (c + 1) + 1, 9 * (c + 1) + (6 if c == 7 else 8))
    spread(gelu(8), 82, 84)
    def hreads(kp):
        return [frag_read(j, s, f"HB{s}") for s in (2 * kp, 2 * kp + 1) for j in range(4)]
    fill[74] += hreads(0) + hreads(1)
    for kp in range(2, 7): fill[73 + kp] += hreads(kp)
    fill[80] += hreads(7)
    fill[85] += hreads(8)
    for c in range(8): spread(epi2(c), 81 + 9 * (c + 1) + 1, 81 + 9 * (c + 1) + 3)

    for q in range(NQ):
        cg = q // 9; kp = q % 9; ph = q // 81; p = cg % 2
        for I in pre[q]: E.ins(I)
        if cfg.stamps and kp == 0 and cg in (1, 9, 10): stamp(E, cfg, {1: 5, 9: 6, 10: 7}[cg])
        buf = 72 + 8 * (q % 3)
        F = list(fill[q]); nF = len(F); k = 0
        m = 0
        for j in range(4):
            for h in range(2):
                s = 2 * kp + h
                a = acc(p, j); D = f"v[{a}:{a+3}]"
                if kp == 0 and h == 0:
                    C = f"v[{64+4*(cg%2)}:{67+4*(cg%2)}]" if ph == 0 else "0"
                else: C = D
                needs = [f"A{q}_{h}"]
                if cg == 0: needs.append(f"B{s}")
                if cg == 9: needs.append(f"HB{s}")
                if kp == 0 and ph == 0: needs.append(f"bias{cg}")
                E.ins(dict(t=f"v_mfma_f32_16x16x32_bf16 {D}, v[{buf+4*h}:{buf+4*h+3}], {breg(j, s)}, {C}", nlg=needs))
                m += 1
                tgt = (nF * m + 7) // 8
                while k < tgt: E.ins(F[k]); k += 1
    stamp(E, cfg, 8)
    A("s_nop 7")
    for I in epi2(8): E.ins(I)
    if cfg.stamps:
        E.wait(vm_all=True)
        stamp(E, cfg, 9)
        A("s_waitcnt lgkmcnt(0)")
        A("s_cmp_lg_u32 s24, 0")
        A(f"s_cbranch_scc1 {name}_end")
        A(f"s_add_u32 s52, s52, {200<<20}\n s_addc_u32 s53, s53, 0\n s_lshl_b32 s3, s2, 8\n v_mov_b32 v1, s3")
        for i in range(10):
            A(f"v_mov_b32 v2, s{60+2*i}\n v_mov_b32 v3, s{61+2*i}\n global_store_dwordx2 v1, v[2:3], s[52:53] offset:{8*i}")
    A(f"{name}_end:\n s_endpgm")
    return E.lines

def reduce_kernel(cfg, name):
    E = Emit(); A = E.raw
    A(f".globl {name}\n.p2align 8\n.type {name},@function\n{name}:")
    A("s_cmp_ge_u32 s2, 576")
    A(f"s_cbranch_scc1 {name}_end")
    A("s_load_dwordx4 s[4:7], s[0:1], 32")
    A("s_load_dwordx2 s[8:9], s[0:1], 56")
    A(f"s_mov_b32 s10, {(2**32 + 17)//18}\n s_mul_hi_u32 s11, s2, s10")
    A("s_mul_i32 s12, s11, 18\n s_sub_u32 s12, s2, s12")
    A("s_lshl_b32 s13, s12, 8\n v_add_u32 v1, s13, v0")
    A("s_mul_i32 s14, s11, 589824\n v_lshlrev_b32 v2, 4, v1\n v_add_u32 v2, s14, v2")
    A("s_waitcnt lgkmcnt(0)")
    A("s_mov_b32 s16, s8\n s_mov_b32 s17, s9\n s_mov_b32 s18, 18874368\n s_mov_b32 s19, 0x20000")
    for s in range(8):
        A(f"s_mov_b32 s{32+s}, {s*73728}")
        A(f"buffer_load_dwordx4 v[{16+4*s}:{19+4*s}], v2, s[16:19], s{32+s} offen {cfg.ld_pol}")
    A("v_lshrrev_b32 v3, 7, v1\n v_lshlrev_b32 v3, 5, v3")
    A("v_bfe_u32 v4, v1, 4, 2\n v_lshl_add_u32 v3, v4, 3, v3")
    A("s_mov_b32 s20, s4\n s_mov_b32 s21, s5\n s_mov_b32 s22, 1152\n s_mov_b32 s23, 0x20000")
    A("buffer_load_dwordx2 v[8:9], v3, s[20:23], 0 offen")
    A("s_mov_b32 s24, s6\n s_mov_b32 s25, s7\n s_mov_b32 s26, 2359296\n s_mov_b32 s27, 0x20000")
    A("v_bfe_u32 v4, v1, 6, 1\n v_and_b32 v5, 15, v1\n v_lshl_add_u32 v4, v4, 5, v5\n s_lshl_b32 s15, s11, 6\n v_add_u32 v4, s15, v4")
    A("v_mul_u32_u24 v4, 1152, v4\n v_add_u32 v4, v4, v3")
    A(f"s_mov_b32 s28, 0xffff0000\n s_mov_b32 s29, {f32(1.0/SC):#x}")
    for s in range(8):
        A(f"s_waitcnt vmcnt({8-s})")
        for r in range(4):
            x = 16 + 4 * s + r
            if s == 0:
                A(f"v_lshlrev_b32 v{48+2*r}, 16, v{x}\n v_and_b32 v{49+2*r}, s28, v{x}")
            else:
                A(f"v_lshlrev_b32 v10, 16, v{x}\n v_and_b32 v11, s28, v{x}\n v_add_f32 v{48+2*r}, v{48+2*r}, v10\n v_add_f32 v{49+2*r}, v{49+2*r}, v11")
    A("s_waitcnt vmcnt(0)")
    A("v_lshlrev_b32 v10, 16, v8\n v_and_b32 v11, s28, v8\n v_lshlrev_b32 v12, 16, v9\n v_and_b32 v13, s28, v9")
    for e in range(8):
        A(f"v_fma_f32 v{48+e}, v{48+e}, s29, v{10+e%4}")
    for e in range(4):
        A(f"v_cvt_pk_bf16_f32 v{56+e}, v{48+2*e}, v{49+2*e}")
    A("buffer_store_dwordx2 v[56:57], v4, s[24:27], 0 offen")
    A("s_mov_b32 s30, 18432\n buffer_store_dwordx2 v[58:59], v4, s[24:27], s30 offen")
    A(f"{name}_end:\n s_endpgm")
    return E.lines

def kd(name, vgpr, accum, sgpr=102):
    return f""".amdhsa_kernel {name}
  .amdhsa_next_free_vgpr {vgpr}
  .amdhsa_next_free_sgpr {sgpr}
  .amdhsa_accum_offset {accum}
  .amdhsa_group_segment_fixed_size 0
  .amdhsa_kernarg_size 64
  .amdhsa_user_sgpr_count 2
  .amdhsa_user_sgpr_kernarg_segment_ptr 1
  .amdhsa_system_sgpr_workgroup_id_x 1
.end_amdhsa_kernel
"""

HEADER = """; Kernarg layout for this problem (64 bytes, ptrs only, base s[0:1]):
"""

def build(cfg):
    n1 = "standalone__mixer_channel_mlp__prompt_kernel"; n2 = "mixer_reduce_kernel"
    s = HEADER
    s += f"; @launch kernel={n1} grid=(256,1,1) block=(256,1,1) lds={LDS_BYTES}\n"
    s += f"; @launch kernel={n2} grid=(576,1,1) block=(256,1,1) lds=0\n"
    s += '.amdgcn_target "amdgcn-amd-amdhsa--gfx950"\n.text\n'
    k1 = main_kernel(cfg, n1); k2 = reduce_kernel(cfg, n2)
    from hazard import check
    check(k1); check(k2)
    s += "\n".join(k1) + "\n" + "\n".join(k2) + "\n"
    s += '.section .rodata,"a"\n.p2align 6\n' + kd(n1, 512, 256) + ".p2align 6\n" + kd(n2, 64, 64, 48)
    return s

if __name__ == "__main__":
    cfg = Cfg()
    out = sys.argv[1]
    for a in sys.argv[2:]:
        k, v = a.split("=")
        cur = getattr(cfg, k)
        setattr(cfg, k, (v not in ("0", "False")) if isinstance(cur, bool) else type(cur)(v))
    open(out, "w").write(build(cfg))
```

```python
import sys
out=[]
def meta(names):
    s=".amdgpu_metadata\n---\namdhsa.version: [1, 2]\namdhsa.kernels:\n"
    for n,wg in names:
        s+=f"""  - .name: {n}
    .symbol: {n}.kd
    .kernarg_segment_size: 24
    .kernarg_segment_align: 8
    .group_segment_fixed_size: 0
    .private_segment_fixed_size: 0
    .wavefront_size: 64
    .sgpr_count: 102
    .vgpr_count: 256
    .max_flat_workgroup_size: {wg}
    .args:
      - {{.name: kernargs, .size: 24, .offset: 0, .value_kind: by_value}}
"""
    s+="...\n.end_amdgpu_metadata\n"
    return s
def kd(n):
    return f""".section .rodata,"a"
.p2align 6
.amdhsa_kernel {n}
  .amdhsa_next_free_vgpr 64
  .amdhsa_next_free_sgpr 102
  .amdhsa_accum_offset 64
  .amdhsa_group_segment_fixed_size 0
  .amdhsa_kernarg_size 24
  .amdhsa_user_sgpr_count 2
  .amdhsa_user_sgpr_kernarg_segment_ptr 1
  .amdhsa_system_sgpr_workgroup_id_x 1
.end_amdhsa_kernel
.text
"""
def kernel(name, NW, depth, gpx, gbytes, seg, prefetch, tolds=True):
    lps=seg//16; rpi=64//lps
    colbytes=gbytes//1152
    npass=colbytes//seg
    instr_per_pass=1152//(rpi*NW)
    U=instr_per_pass
    while U>12:
        for d in (2,3):
            if U%d==0: U//=d; break
    L=[]
    A=L.append
    A(f".globl {name}\n.p2align 8\n.type {name},@function\n{name}:")
    A("s_memrealtime s[20:21]\n s_memtime s[22:23]")
    A("s_load_dwordx4 s[4:7], s[0:1], 0")
    A("s_and_b32 s8, s2, 7\n s_lshr_b32 s9, s2, 3")
    A(f"s_and_b32 s10, s9, {gpx-1}\n s_mul_i32 s11, s8, {gpx}\n s_add_u32 s11, s11, s10")
    A(f"s_and_b32 s11, s11, {9216//colbytes-1}")
    A(f"s_mul_i32 s11, s11, {colbytes}")
    A("v_lshrrev_b32 v1, 6, v0\n v_and_b32 v2, 63, v0")
    A("v_readfirstlane_b32 s12, v1")
    A(f"v_lshrrev_b32 v3, {lps.bit_length()-1}, v2\n v_and_b32 v4, {lps-1}, v2")
    A(f"v_mul_u32_u24 v5, {rpi}, v1\n v_add_u32 v3, v3, v5")
    A(f"v_mul_u32_u24 v3, 9216, v3\n v_lshlrev_b32 v4, 4, v4\n v_add_u32 v3, v3, v4\n v_add_u32 v3, s11, v3")
    A("s_waitcnt lgkmcnt(0)")
    A("s_mov_b32 s16, s4\n s_mov_b32 s17, s5\n s_mov_b32 s18, 0x1000000\n s_mov_b32 s19, 0x20000")
    A("s_lshl_b32 s12, s12, 10")
    if prefetch:
        sh=32//gpx
        lines_per_row=(colbytes+127)//128
        rows_per_sharer=1152//sh
        A(f"s_lshr_b32 s13, s9, {gpx.bit_length()-1}")
        A(f"s_mul_i32 s13, s13, {rows_per_sharer*9216}\n s_add_u32 s13, s13, s11")
        nthreads=NW*64
        A(f"v_cmp_gt_u32 vcc, {rows_per_sharer}, v0\n v_mul_u32_u24 v6, 9216, v0\n s_and_saveexec_b64 s[30:31], vcc")
        for c in range(lines_per_row):
            A(f"buffer_load_dword v7, v6, s[16:19], s13 offen offset:{c*128}")
        A("s_mov_b64 exec, s[30:31]")
    A("s_mov_b32 s14, 0")
    A(f"s_mov_b32 s24, {npass}")
    A(f"{name}_pass:")
    A("s_mov_b32 s15, s14")
    A(f"s_mov_b32 s25, {instr_per_pass//U}")
    A(f"{name}_loop:")
    for u in range(U):
        A(f"s_add_u32 m0, s12, {u*NW*1024}")
        A(f"s_waitcnt vmcnt({depth})")
        if tolds:
            A(f"buffer_load_dwordx4 v3, s[16:19], s15 offen lds")
        else:
            A(f"buffer_load_dwordx4 v[{8+4*u}:{11+4*u}], v3, s[16:19], s15 offen")
        A(f"s_add_u32 s15, s15, {NW*rpi*9216}")
    A(f"s_sub_u32 s25, s25, 1\n s_cmp_lg_u32 s25, 0\n s_cbranch_scc1 {name}_loop")
    A(f"s_add_u32 s14, s14, {seg}")
    A(f"s_sub_u32 s24, s24, 1\n s_cmp_lg_u32 s24, 0\n s_cbranch_scc1 {name}_pass")
    A("s_waitcnt vmcnt(0)\n s_barrier")
    A("s_memrealtime s[26:27]\n s_memtime s[28:29]\n s_waitcnt lgkmcnt(0)")
    A("v_mov_b32 v8, s20\n v_mov_b32 v9, s21\n v_mov_b32 v10, s26\n v_mov_b32 v11, s27\n v_mov_b32 v12, s22\n v_mov_b32 v13, s23\n v_mov_b32 v14, s28\n v_mov_b32 v15, s29")
    A("s_lshl_b32 s3, s2, 5\n v_mov_b32 v1, s3")
    A("v_cmp_eq_u32 vcc, 0, v0\n s_and_saveexec_b64 s[30:31], vcc\n s_cbranch_execz %s_end"%name)
    A("global_store_dwordx4 v1, v[8:11], s[6:7]\n global_store_dwordx4 v1, v[12:15], s[6:7] offset:16")
    A(f"{name}_end:\n s_endpgm")
    return "\n".join(L)+"\n"+kd(name)
cfgs=[]
for NW in (4,8):
  for depth in (8,24):
    for seg in (128,):
      for pf in (0,1):
        cfgs.append((f"s8_w{NW}_d{depth}_s{seg}_p{pf}",NW,depth,1,1327104,seg,pf,True))
cfgs.append(("s8_w4_d24_s64_p1",4,24,1,1327104,64,1,True))
cfgs.append(("s8_w4_d24_s384_p1",4,24,1,1327104,128,1,False))
cfgs.append(("s16_w4_d24_s64_p1",4,24,2,663552,64,1,True))
cfgs.append(("s16_w4_d24_s64_p0",4,24,2,663552,64,0,True))
s='.amdgcn_target "amdgcn-amd-amdhsa--gfx950"\n.text\n'
args=[]
for c in cfgs:
    s+=kernel(*c)
    args+= [c[0],"256",str(c[1]*64),str(128*1024),str(c[4])]
s+=meta([(c[0],c[1]*64) for c in cfgs])
open("dmab.s","w").write(s)
open("dmab.args","w").write(" ".join(args))
```

```python
from gen_dma import meta
def kd(n, nv):
    return f""".section .rodata,"a"
.p2align 6
.amdhsa_kernel {n}
  .amdhsa_next_free_vgpr {nv}
  .amdhsa_next_free_sgpr 102
  .amdhsa_accum_offset 256
  .amdhsa_group_segment_fixed_size 0
  .amdhsa_kernarg_size 24
  .amdhsa_user_sgpr_count 2
  .amdhsa_user_sgpr_kernarg_segment_ptr 1
  .amdhsa_system_sgpr_workgroup_id_x 1
.end_amdhsa_kernel
.text
"""
def kernel(name, NW, gelu, dma, st, chain=3, rdiv=1):
    L=[]; A=L.append
    f = 8//NW
    A(f".globl {name}\n.p2align 8\n.type {name},@function\n{name}:")
    A("s_load_dwordx4 s[4:7], s[0:1], 0")
    A("v_lshrrev_b32 v1, 6, v0\n v_and_b32 v2, 63, v0\n s_nop 0\n v_readfirstlane_b32 s12, v1")
    A("s_waitcnt lgkmcnt(0)")
    A("s_mov_b32 s16, s4\n s_mov_b32 s17, s5\n s_mov_b32 s18, 0x8000000\n s_mov_b32 s19, 0x20000")
    A("v_lshlrev_b32 v3, 4, v0")
    for i in range(36):
        A(f"s_mov_b32 s13, {i*8192}\n buffer_load_dwordx4 v[{64+4*i}:{67+4*i}], v3, s[16:19], s13 offen")
    A("s_and_b32 s8, s2, 7\n s_lshr_b32 s9, s2, 3\n s_mul_i32 s11, s8, 1327104")
    A("s_mul_i32 s13, s9, 41472\n s_add_u32 s13, s13, s11\n v_lshlrev_b32 v4, 7, v0\n v_min_u32 v4, 41344, v4\n buffer_load_dword v5, v4, s[16:19], s13 offen")
    if NW==4: A("v_add_u32 v4, 0x8000, v4\n v_min_u32 v4, 41344, v4\n buffer_load_dword v5, v4, s[16:19], s13 offen")
    A("s_lshl_b32 s12, s12, 10\n v_add_u32 v4, s11, v3\n s_mov_b32 s15, 0")
    for u in range(15*f):
        A(f"s_add_u32 m0, s12, {u*NW*1024}\n s_add_u32 s15, s15, {NW*1024}\n buffer_load_dwordx4 v4, s[16:19], s15 offen lds")
    A("s_mul_i32 s13, s2, 294912\n s_add_u32 s13, s13, 0x2000000\n v_add_u32 v6, s13, v3\n s_mov_b32 s14, 0")
    for i in range(32): A(f"v_mov_b32 v{8+i}, 0")
    for i in range(16): A(f"v_mov_b32 v{208+i}, 1.0")
    A("v_lshlrev_b32 v3, 3, v2")
    A("s_waitcnt vmcnt(0) lgkmcnt(0)\n s_barrier\n s_sleep 60\n s_barrier")
    A("s_memrealtime s[20:21]\n s_memtime s[22:23]")
    A(f"s_mov_b32 s24, 16\n s_mov_b32 s15, 0")
    A(f"{name}_loop:")
    n = 36*f
    va=[]
    if gelu:
        for h in range(f):
            for op in ("fma","mul","exp","add","rcp","mul2"):
                for r in range(8): va.append((op, 208+8*(h%2)+r, 8+16+8*h+r))
            for r in range(4): va.append(("cvt",224+r,208+2*r))
    wt=[2 if o[0] in("exp","rcp") else 1 for o in va]; tot=sum(wt); k=0; cum=0
    for g in range(n):
        if g % (n//3)==0: A(f"s_waitcnt vmcnt({9*f//max(1,dma)})\n s_barrier")
        a=40+4*((g//f)%6) if False else 40+4*(g%6); b=64+4*(g%36)
        acc=8+4*((g//chain)%(2*f))
        A(f"s_waitcnt lgkmcnt(8)\n v_mfma_f32_16x16x32_bf16 v[{acc}:{acc+3}], v[{a}:{a+3}], v[{b}:{b+3}], v[{acc}:{acc+3}]")
        if g % (f*rdiv) == 0:
            r=g//f; A(f"ds_read_b64_tr_b16 v[{40+2*(r%12)}:{41+2*(r%12)}], v3 offset:{(r*1536)%65536}")
        if dma and g%(4*dma)==1:
            u=g//4; A(f"s_add_u32 m0, s12, {u*NW*1024}\n s_add_u32 s15, s15, {NW*1024}\n buffer_load_dwordx4 v4, s[16:19], s15 offen lds")
        if st and g in ((4,20)[:st] if f==1 else (4,6)):
            A(f"buffer_store_dwordx4 v[64:67], v6, s[16:19], s14 offen sc1\n s_add_u32 s14, s14, {NW*1024}")
        while k<len(va) and cum*n < (g+1)*tot:
            op,t,x=va[k]
            A({"fma":f"v_fma_f32 v{t}, v{x}, v{x}, 1.0","mul":f"v_mul_f32 v{t}, 0.5, v{t}","exp":f"v_exp_f32 v{t}, v{t}","add":f"v_add_f32 v{t}, 1.0, v{t}","rcp":f"v_rcp_f32 v{t}, v{t}","mul2":f"v_mul_f32 v{t}, v{x}, v{t}","cvt":f"v_cvt_pk_bf16_f32 v{t}, v{x}, v{x+1}"}[op])
            cum+=wt[k]; k+=1
    A("s_nop 7")
    for i in range(8*f): A(f"v_mul_f32 v{24+i}, 0x3c800000, v{8+i}\n v_mov_b32 v{8+i}, 0")
    A(f"s_sub_u32 s24, s24, 1\n s_cmp_lg_u32 s24, 0\n s_cbranch_scc1 {name}_loop")
    A("s_waitcnt vmcnt(0) lgkmcnt(0)\n s_barrier")
    A("s_memrealtime s[26:27]\n s_memtime s[28:29]\n s_waitcnt lgkmcnt(0)")
    A("v_mov_b32 v8, s20\n v_mov_b32 v9, s21\n v_mov_b32 v10, s26\n v_mov_b32 v11, s27\n v_mov_b32 v12, s22\n v_mov_b32 v13, s23\n v_mov_b32 v14, s28\n v_mov_b32 v15, s29")
    A("s_lshl_b32 s3, s2, 5\n v_mov_b32 v1, s3")
    A("v_cmp_eq_u32 vcc, 0, v0\n s_and_saveexec_b64 s[30:31], vcc\n s_cbranch_execz %s_end"%name)
    A("global_store_dwordx4 v1, v[8:11], s[6:7]\n global_store_dwordx4 v1, v[12:15], s[6:7] offset:16")
    A(f"{name}_end:\n s_endpgm")
    return "\n".join(L)+"\n"+kd(name, 256 if NW==8 else 512)
cfgs=[("w8_p1",8,1,1,0),("w8_p1_h",8,1,2,0),("w8_p2",8,0,1,1),("w8_p2_h2",8,0,2,2),("w8_p1_l1",8,1,1,0,3,2),("w8_p2_l1",8,0,1,1,3,2),("w8_p1_h_l1",8,1,2,0,3,2),("w8_p2_h2_l1",8,0,2,2,3,2),("w8_p1b",8,1,1,0),("w8_p2b",8,0,1,1)]
s='.amdgcn_target "amdgcn-amd-amdhsa--gfx950"\n.text\n'
args=[]
for c in cfgs:
    s+=kernel(*c); args+=[c[0],"256",str(64*c[1]),"131072","16"]
s+=meta([(c[0],512) for c in cfgs]).replace(".vgpr_count: 256",".vgpr_count: 512")
open("mix3.s","w").write(s); open("mix3.args","w").write(" ".join(args))
```
